```python
import torch

def _softmax(x, axis=-1):
    return torch.softmax(x, dim=axis)
def _gelu(x):
    return torch.nn.functional.gelu(x, approximate="tanh")
def _silu(x):
    return torch.nn.functional.silu(x)
def _sigmoid(x):
    return torch.sigmoid(x)
def _layernorm(x, axis=-1, eps=1e-5):
    m = x.mean(dim=axis, keepdim=True)
    v = x.var(dim=axis, keepdim=True, unbiased=False)
    return (x - m) / torch.sqrt(v + eps)
def _scatter_add(tgt, idx, src, axis=0):
    return tgt.clone().index_add_(axis, idx, src)
def _segment_sum(src, seg, n):
    out = torch.zeros((n,) + src.shape[1:], dtype=src.dtype)
    return out.index_add_(0, seg, src)
def _pad(x, pw):
    flat = tuple(v for pair in reversed(pw) for v in pair)
    return torch.nn.functional.pad(x, flat)

kernel_name = 'recurrent_scan__mha_block_cached__mixer_token_mlp__prompt'

def setup_inputs():

    _w = (lambda a: (lambda t: t.to(torch.bfloat16) if t.is_floating_point() else t)(torch.as_tensor(a)))
    def _A_setup():
        B, Sq, D = 1, 2048, 640
        H, Sk, Dh = 32, 2048, 128
        return {
            "x": _w((lambda *s: torch.randn(*s, dtype=torch.bfloat16) * 0.1)(B, Sq, D)),
            "k_cache": _w((lambda *s: torch.randn(*s, dtype=torch.bfloat16) * 0.8)(B, H, Sk, Dh)),
            "v_cache": _w((lambda *s: torch.randn(*s, dtype=torch.bfloat16) * 3.2)(B, H, Sk, Dh)),
            "wq": _w((lambda *s: torch.randn(*s, dtype=torch.bfloat16) * 0.8)(D, H * Dh) * (D ** -0.5)),
            "wo": _w((lambda *s: torch.randn(*s, dtype=torch.bfloat16) * 3.2)(H * Dh, D) * ((H * Dh) ** -0.5)),
        }
    _A_in = _A_setup()

    def _B_setup():
        B, S, D, F = 1, 2048, 640, 1728
        return {
            "x": _w((lambda *s: torch.randn(*s, dtype=torch.bfloat16) * 0.1)(B, S, D)),
            "w1": _w((lambda *s: torch.randn(*s, dtype=torch.bfloat16) * 3.2)(S, F) * (S ** -0.5)),
            "b1": _w((lambda *s: torch.randn(*s, dtype=torch.bfloat16) * 3.2)(F) * 0.02),
            "w2": _w((lambda *s: torch.randn(*s, dtype=torch.bfloat16) * 3.2)(F, S) * (F ** -0.5)),
            "b2": _w((lambda *s: torch.randn(*s, dtype=torch.bfloat16) * 3.2)(S) * 0.02),
        }
    _B_in = _B_setup()

    return {
        "A_x": _A_in["x"],
        "A_k_cache": _A_in["k_cache"],
        "A_v_cache": _A_in["v_cache"],
        "A_wq": _A_in["wq"],
        "A_wo": _A_in["wo"],
        "B_x": _B_in["x"],
        "B_w1": _B_in["w1"],
        "B_b1": _B_in["b1"],
        "B_w2": _B_in["w2"],
        "B_b2": _B_in["b2"],
    }

def reference(A_x, A_k_cache, A_v_cache, A_wq, A_wo, B_x, B_w1, B_b1, B_w2, B_b2):
    def _A_ref(x, k_cache, v_cache, wq, wo):
        B, Sq, D = x.shape
        H, Dh = 32, 128
        q = (lambda x, *d: x.permute(*d))((x @ wq).reshape(B, Sq, H, Dh), 0, 2, 1, 3)
        scores = torch.einsum("bhqd,bhkd->bhqk", q, k_cache) * (Dh ** -0.5)
        p = _softmax(scores, axis=-1)
        o = torch.einsum("bhqk,bhkd->bhqd", p, v_cache)
        return (lambda x, *d: x.permute(*d))(o, 0, 2, 1, 3).reshape(B, Sq, H * Dh) @ wo

    def _B_ref(x, w1, b1, w2, b2):
        B, S, D = x.shape
        h = _layernorm(x, axis=-1)
        u = torch.einsum("bsd,sf->bdf", h, w1) + b1
        u = _gelu(u)
        y = torch.einsum("bdf,fs->bds", u, w2) + b2
        return (lambda x, *d: x.permute(*d))(y, 0, 2, 1)

    x = A_x
    xn = _layernorm(x, axis=-1)
    s = _A_ref(xn, A_k_cache, A_v_cache, A_wq, A_wo)
    g = _silu(_B_ref(xn, B_w1, B_b1, B_w2, B_b2))
    return x + s * g
```

```python
import re


class K:
    def __init__(self, name):
        self.name = name
        self.L = []
        self.vm = []
        self.lg = []

    def __call__(self, s):
        for ln in s.split("\n"):
            ln = ln.strip()
            if ln:
                self.L.append(ln)

    def label(self, n):
        self.L.append(n + ":")

    def c(self, s):
        self.L.append("; " + s)

    def vmem(self, s, tag):
        self(s)
        self.vm.append(tag)

    def vm_n(self, pred):
        last = -1
        for i, t in enumerate(self.vm):
            if pred(t):
                last = i
        n = len(self.vm) - 1 - last
        return min(n, 63)

    def wait_vm(self, pred):
        self(f"s_waitcnt vmcnt({self.vm_n(pred)})")

    def lds(self, s, tag):
        self(s)
        self.lg.append(tag)

    def lg_n(self, pred):
        last = -1
        for i, t in enumerate(self.lg):
            if pred(t):
                last = i
        return min(len(self.lg) - 1 - last, 15)

    def text(self):
        out = []
        for ln in self.L:
            if ln.endswith(":") or ln.startswith("."):
                out.append(ln)
            else:
                out.append("  " + ln)
        return "\n".join(out)


def vr(b, n=1, f="v"):
    return f"{f}{b}" if n == 1 else f"{f}[{b}:{b+n-1}]"


def ar(b, n=1):
    return vr(b, n, "a")


def sr(b, n=1):
    return vr(b, n, "s")


class Reg:
    def __init__(self, f, b, n):
        self.f, self.b, self.n = f, b, n

    def __str__(self):
        return vr(self.b, self.n, self.f)

    def sub(self, o, n=1):
        assert o + n <= self.n
        return Reg(self.f, self.b + o, n)

    def __getitem__(self, o):
        return self.sub(o, 1)


def mfma16(d, a, b, c):
    return f"v_mfma_f32_16x16x32_bf16 {d}, {a}, {b}, {c}"


def kernel_wrap(k, nvgpr, accoff, nsgpr=96):
    n = k.name
    return (
        f".text\n.globl {n}\n.p2align 8\n.type {n},@function\n{n}:\n{k.text()}\n"
        f'.section .rodata,"a"\n.p2align 6\n.amdhsa_kernel {n}\n'
        f"  .amdhsa_next_free_vgpr {nvgpr}\n  .amdhsa_next_free_sgpr {nsgpr}\n  .amdhsa_accum_offset {accoff}\n"
        f"  .amdhsa_group_segment_fixed_size 0\n  .amdhsa_kernarg_size 104\n  .amdhsa_user_sgpr_count 2\n"
        f"  .amdhsa_user_sgpr_kernarg_segment_ptr 1\n  .amdhsa_system_sgpr_workgroup_id_x 1\n"
        f"  .amdhsa_float_denorm_mode_32 3\n"
        f".end_amdhsa_kernel\n"
    )


_reg_re = re.compile(r"\b([vas])(\d+)\b|\b([vas])\[(\d+):(\d+)\]|\b(vcc|exec|m0|scc)\b")
TRANS = ("v_exp_f32", "v_log_f32", "v_rcp_f32", "v_rsq_f32", "v_sqrt_f32", "v_sin_f32", "v_cos_f32")


def regs_of(op):
    out = set()
    for m in _reg_re.finditer(op):
        if m.group(1):
            out.add((m.group(1), int(m.group(2))))
        elif m.group(3):
            for i in range(int(m.group(4)), int(m.group(5)) + 1):
                out.add((m.group(3), i))
        else:
            out.add((m.group(6), 0))
    return out


def split_ops(rest):
    ops, depth, cur = [], 0, ""
    for ch in rest:
        if ch == "[":
            depth += 1
        if ch == "]":
            depth -= 1
        if ch == "," and depth == 0:
            ops.append(cur.strip())
            cur = ""
        else:
            cur += ch
    if cur.strip():
        ops.append(cur.strip())
    return ops


class Ins:
    def __init__(self, txt):
        self.txt = txt
        p = txt.split(None, 1)
        self.op = p[0]
        ops = split_ops(p[1]) if len(p) > 1 else []
        self.ops = ops
        op = self.op
        self.mfma = op.startswith("v_mfma")
        self.valu = op.startswith("v_") and not self.mfma
        self.salu = op.startswith("s_")
        self.ds = op.startswith("ds_")
        self.vmem = op.startswith(("buffer_", "global_", "flat_"))
        self.trans = op.replace("_e32", "").replace("_e64", "") in TRANS
        self.dpp = "_dpp" in op or any(("row_" in o or "quad_perm" in o) for o in ops)
        self.w = set()
        self.r = set()
        self.srcC = set()
        self.storedata = set()
        if self.mfma:
            self.w = regs_of(ops[0])
            self.srcAB = regs_of(ops[1]) | regs_of(ops[2])
            self.srcC = regs_of(ops[3])
            self.r = self.srcAB | self.srcC
            self.passes = 4 if "16x16x32" in op else 8
        elif self.valu:
            if op.startswith("v_cmp"):
                self.w = regs_of(ops[0])
                for o in ops[1:]:
                    self.r |= regs_of(o)
            elif "permlane" in op and "swap" in op:
                self.w = regs_of(ops[0]) | regs_of(ops[1])
                self.r = set(self.w)
            else:
                self.w = regs_of(ops[0])
                rest = ops[1:]
                if "_co_" in op:
                    self.w |= regs_of(ops[1])
                    rest = ops[2:]
                for o in rest:
                    self.r |= regs_of(o)
                if op.startswith(("v_fmac", "v_dot2c", "v_writelane")) or self.dpp:
                    self.r |= regs_of(ops[0])
                if op.startswith("v_cndmask") and len(ops) == 3:
                    self.r.add(("vcc", 0))
        elif self.ds:
            if op.startswith(("ds_read", "ds_bpermute", "ds_permute", "ds_swizzle")):
                self.w = regs_of(ops[0])
                for o in ops[1:]:
                    self.r |= regs_of(o)
            else:
                for o in ops:
                    self.r |= regs_of(o)
        elif self.vmem:
            lds = txt.rstrip().endswith(" lds") or "_lds_" in op
            self.ldsdma = lds
            if "load" in op and not lds:
                self.w = regs_of(ops[0])
                for o in ops[1:]:
                    self.r |= regs_of(o)
            else:
                for o in ops:
                    self.r |= regs_of(o)
                if lds:
                    self.r.add(("m0", 0))
                if "store" in op and ("x4" in op or "x3" in op):
                    self.storedata = regs_of(ops[0]) if op.startswith("buffer") else regs_of(ops[1])
        elif self.salu:
            if op.startswith(("s_cmp", "s_cbranch", "s_branch", "s_waitcnt", "s_nop", "s_barrier", "s_endpgm", "s_setprio", "s_bitcmp", "s_sleep")):
                for o in ops:
                    self.r |= regs_of(o)
            elif ops:
                self.w = regs_of(ops[0])
                for o in ops[1:]:
                    self.r |= regs_of(o)
                if "saveexec" in op:
                    self.w.add(("exec", 0))

    def states(self):
        if self.op == "s_nop":
            return int(self.ops[0], 0) + 1
        return 1


def check_seq(seq, where=""):
    probs = []
    n = len(seq)
    for i, p in enumerate(seq):
        dist = 0
        for j in range(i + 1, min(n, i + 24)):
            c = seq[j]
            need = 0
            why = ""
            vw = {x for x in p.w if x[0] in "va" and len(x[0]) == 1}
            sw = {x for x in p.w if x[0] in ("s", "vcc")}
            if p.valu:
                if c.mfma and (vw & c.r):
                    need, why = 2, "valu->mfma"
                if p.trans and c.valu and not c.trans and (vw & c.r):
                    need, why = max(need, 1), "trans->valu"
                if c.valu and c.op.startswith(("v_readlane", "v_readfirstlane")) and (vw & c.r):
                    need, why = max(need, 1), "valu->readlane"
                if c.valu and "permlane" in c.op and (vw & c.r):
                    need, why = max(need, 2), "valu->permlane"
                if c.valu and c.dpp and (vw & c.r):
                    need, why = max(need, 2), "valu->dpp"
                if c.valu and (sw & c.r):
                    need, why = max(need, 2), "valu sgpr->valu"
                    if c.op.startswith(("v_readlane", "v_writelane")):
                        need = 4
                if c.vmem and (sw & c.r):
                    need, why = max(need, 5), "valu sgpr->vmem"
                if ("exec", 0) in p.w and (c.mfma or c.dpp):
                    need, why = max(need, 5), "valu exec"
            if p.mfma:
                t = {4: (8, 6, 3), 8: (12, 10, 7)}[p.passes]
                if c.mfma:
                    if p.w & c.srcAB:
                        need, why = t[0], "mfma->mfmaAB"
                    elif (p.w & c.srcC) and p.w != c.srcC:
                        need, why = t[1], "mfma->mfmaC partial"
                elif c.valu or c.ds or c.vmem:
                    if p.w & (c.r | c.w):
                        need, why = t[0], "mfma->use"
                    if c.valu and (p.srcC & c.w):
                        need, why = max(need, t[2]), "mfmaC WAR"
            if p.salu and ("m0", 0) in p.w and c.vmem and getattr(c, "ldsdma", False):
                need, why = max(need, 1), "m0->dma"
            if p.storedata and (c.valu or c.mfma) and (p.storedata & c.w):
                need, why = max(need, 2), "store WAR"
            if need > dist:
                probs.append(f"{where} [{why}] need {need} have {dist}: '{p.txt}' -> '{c.txt}'")
            dist += c.states()
            if dist >= 13:
                break
    return probs


def check_kernel(k):
    lines = [l for l in k.L if not l.startswith(";") and not l.startswith(".")]
    labels = {}
    seq = []
    for l in lines:
        if l.endswith(":"):
            labels[l[:-1]] = len(seq)
        else:
            seq.append(Ins(l.split(";")[0].strip()))
    probs = check_seq(seq, k.name)
    for i, ins in enumerate(seq):
        if ins.op.startswith(("s_cbranch", "s_branch")):
            t = labels.get(ins.ops[0])
            if t is None:
                continue
            s2 = seq[max(0, i - 24) : i + 1] + seq[t : t + 24]
            probs += check_seq(s2, k.name + "@" + ins.ops[0])
    return sorted(set(probs))
```

```python
from asmlib import *

A_X, A_K, A_V, A_WQ, A_WO, A_BX, A_W1, A_B1, A_W2, A_B2, A_OUT, A_DBG, A_WS = [8 * i for i in range(13)]
XN_OFF = 0x0000000
H_OFF = 0x0300000
U_OFF = 0x0600000
WO_OFF = 0x0900000
W2_OFF = 0x0E00000
O_OFF = 0x1500000
WS_END = 0x2500000

LOG2E = 1.4426950408889634


def f2u(x):
    import struct

    return "0x%08x" % struct.unpack("<I", struct.pack("<f", x))[0]


def srd(k, d, base, nbytes, off=None):
    if off is None:
        k(f"s_mov_b32 s{d}, s{base}")
        k(f"s_and_b32 s{d+1}, s{base+1}, 0xffff")
    else:
        k(f"s_add_u32 s{d}, s{base}, {off}")
        k(f"s_addc_u32 s{d+1}, s{base+1}, 0")
        k(f"s_and_b32 s{d+1}, s{d+1}, 0xffff")
    k(f"s_mov_b32 s{d+2}, {nbytes}")
    k(f"s_mov_b32 s{d+3}, 0x20000")
```

```python
from common import *

V_LANE = 2
V_AK = 10
V_AV = 14
V_OK = 22
V_OV = 26
V_AW = 28
V_OW = 32
V_L16 = 33
V_LACC = 34
V_ONES = 40
V_NEGM = 44
V_S = (64, 96)
V_P = (128, 144)
V_QACC = 64
V_Q = 192
A_O = 0
A_KF = 128
A_VF = 160
A_L = 192
A_XR = 0
A_WF = 128

LDS_K = 0
LDS_V = 65536
LDS_W = 98304
LDS_FLAG = 131072
TILE = 16384

S_K, S_V, S_WQ, S_XN, S_O = 4, 8, 12, 16, 20
S_WAVE, S_HEAD, S_QB = 24, 25, 26
S_M0K, S_M0V, S_KOFF, S_VOFF, S_CNT, S_RERUN = 27, 28, 29, 30, 31, 32
S_T = 33
S_WOFF, S_M0W = 34, 35
S_T2 = 36

QSCALE = LOG2E * 128 ** -0.5


def Sreg(buf, kt, qb):
    return vr(V_S[buf] + 4 * (qb * 2 + kt), 4)


def Qreg(qb, ks):
    return vr(V_Q + 4 * (qb * 4 + ks), 4)


def Oreg(db, qb):
    return ar(A_O + 4 * (db * 4 + qb), 4)


def kread(f, step):
    kt, ks = f >> 2, f & 3
    off = ((step >> 1) & 3) * TILE + (step & 1) * 8192 + kt * 4096
    return f"ds_read_b128 {ar(A_KF + 4*f, 4)}, v{V_AK + ks} offset:{off}"


def vread(db, half, step):
    off = ((step >> 1) & 3) * TILE + (step & 1) * 8192 + half * 4096
    return f"ds_read_b64_tr_b16 {ar(A_VF + 4*db + 2*half, 2)}, v{V_AV + db} offset:{off}"


def dma_k(j):
    return f"buffer_load_dwordx4 v{V_OK + j}, s[{S_K}:{S_K+3}], s{S_KOFF} offen offset:{1024*j} lds"


def dma_v(j):
    return f"buffer_load_dwordx4 v{V_OV + (j & 1)}, s[{S_V}:{S_V+3}], s{S_VOFF} offen offset:{1024*j} lds"


def issue_tile_simple(k, which, tile):
    m0b, off, f = (S_M0K, S_KOFF, dma_k) if which == "K" else (S_M0V, S_VOFF, dma_v)
    k(f"s_add_u32 m0, s{m0b}, {(tile & 3) * TILE}")
    k(f"s_mov_b32 s{off}, {tile * TILE}")
    for j in range(4):
        k.vmem(f(j), (which, tile))


def emit_gaps(k, mf, sc, vec):
    for g in range(len(mf)):
        if mf[g] is not None:
            k(mf[g])
        elif vec[g] and not sc[g]:
            k("s_nop 0")
        for s in sc[g]:
            if callable(s):
                s()
            else:
                k(s)
        for kind, txt, tag in vec[g]:
            if kind == "ds":
                k.lds(txt, tag)
            elif kind == "vm":
                k.vmem(txt, tag)
            else:
                k(txt)


def step(k, i, first_pv=False):
    do_qk = i + 1 <= 63
    do_sm = 0 <= i <= 63
    do_pv = i - 1 >= 0
    NG = 66
    mf = [None] * NG
    sc = [[] for _ in range(NG)]
    vec = [[] for _ in range(NG)]
    if do_qk:
        b = (i + 1) & 1
        for f in range(8):
            kt, ks = f >> 2, f & 3
            for qb in range(4):
                c = vr(V_NEGM + 4 * qb, 4) if ks == 0 else Sreg(b, kt, qb)
                mf[4 * f + qb] = mfma16(Sreg(b, kt, qb), ar(A_KF + 4 * f, 4), Qreg(qb, ks), c)
    if do_pv:
        pb = V_P[(i - 1) & 1]
        for db in range(8):
            for qb in range(4):
                c = "0" if first_pv else Oreg(db, qb)
                mf[32 + 4 * db + qb] = mfma16(Oreg(db, qb), ar(A_VF + 4 * db, 4), vr(pb + 4 * qb, 4), c)
        for n, qb in enumerate((2, 3)):
            l = ar(A_L + 4 * n, 4)
            mf[64 + n] = mfma16(l, vr(V_ONES, 4), vr(pb + 4 * qb, 4), "0" if first_pv else l)
    cap = [0] * NG
    for g in range(NG):
        cap[g] = 0 if (g % 2 == 0 and g < 64) else 2
    if i + 2 <= 63:
        for f in range(8):
            g = 4 * f + 3
            vec[g].append(("ds", kread(f, i + 2), ("K", i + 2)))
            cap[g] -= 1
    if do_sm:
        for db in range(8):
            for h in range(2):
                g = 35 + 4 * db + 2 * h
                vec[g].append(("ds", vread(db, h, i), ("V", i, db)))
                cap[g] -= 1
    t = i >> 1
    if 0 <= i <= 63:
        if i % 2 == 0 and t + 3 <= 31:
            sc[4].append(f"s_add_u32 m0, s{S_M0K}, {((t + 3) & 3) * TILE}")
            for j in range(4):
                vec[5 + 4 * j].append(("vm", dma_k(j), ("K", t + 3)))
                cap[5 + 4 * j] -= 2
            sc[18].append(f"s_add_u32 s{S_KOFF}, s{S_KOFF}, {TILE}")
        if i % 2 == 1 and t + 2 <= 31:
            sc[4].append(f"s_add_u32 m0, s{S_M0V}, {((t + 2) & 3) * TILE}")
            for j in range(4):
                vec[5 + 4 * j].append(("vm", dma_v(j), ("V", t + 2)))
                cap[5 + 4 * j] -= 2
            sc[18].append(f"s_add_u32 s{S_VOFF}, s{S_VOFF}, {TILE}")
        if i % 2 == 0:
            sc[0].append(lambda: k.wait_vm(lambda x: x in (("K", t + 1), ("V", t))))
            sc[1].append("s_barrier")
    if do_sm:
        sb = V_S[i & 1]
        pb = V_P[i & 1]
        for e in range(32):
            vec[2 * e].append(("va", f"v_exp_f32 v{sb+e}, v{sb+e}", None))
        work = []
        for p in range(16):
            work.append((4 * p + 3, 0, f"v_cvt_pk_bf16_f32 v{pb+p}, v{sb+2*p}, v{sb+2*p+1}"))
        for e in range(16):
            acc = V_LACC + (e >> 3) * 2 + (e & 1)
            work.append((2 * e + 1, 1, f"v_add_f32 v{acc}, v{acc}, v{sb+e}"))
        work.sort()
        for g in range(NG):
            while cap[g] > 0:
                cand = [w for w in work if w[0] <= g]
                if not cand:
                    break
                w = cand[0]
                work.remove(w)
                vec[g].append(("va", w[2], None))
                cap[g] -= 1
        assert not work, work
    if do_pv:
        if do_qk:
            sc[22].append(lambda: k(f"s_waitcnt lgkmcnt({k.lg_n(lambda x: x[0] == 'V' and x[1] == i - 1)})"))
        else:
            for db in range(8):
                sc[31 + 4 * db].append(lambda db=db: k(f"s_waitcnt lgkmcnt({k.lg_n(lambda x: x == ('V', i - 1, db))})"))
    if i + 2 <= 63:
        sc[44].append(lambda: k(f"s_waitcnt lgkmcnt({k.lg_n(lambda x: x == ('K', i + 2))})"))
    return mf, sc, vec


def xlane(k, op, regs, tmp):
    for sw in ("v_permlane16_swap_b32", "v_permlane32_swap_b32"):
        for n, r in enumerate(regs):
            k(f"v_mov_b32 v{tmp+n}, v{r}")
        k("s_nop 1")
        for n, r in enumerate(regs):
            k(f"{sw} v{r}, v{tmp+n}")
        k("s_nop 1")
        for n, r in enumerate(regs):
            k(f"{op} v{r}, v{r}, v{tmp+n}")


def gen_attn():
    k = K("attn_kernel")
    k("s_cmp_ge_u32 s2, 256")
    k("s_cbranch_scc1 ATT_END")
    k(f"s_load_dwordx4 s[40:43], s[0:1], {A_K}")
    k(f"s_load_dwordx2 s[44:45], s[0:1], {A_WQ}")
    k(f"s_load_dwordx2 s[46:47], s[0:1], {A_WS}")
    k("v_lshrrev_b32 v1, 6, v0")
    k(f"v_and_b32 v{V_LANE}, 63, v0")
    k(f"v_readfirstlane_b32 s{S_WAVE}, v1")
    k(f"s_and_b32 s{S_HEAD}, s2, 31")
    k(f"s_lshr_b32 s{S_QB}, s2, 5")
    k("v_and_b32 v3, 15, v2")
    k("v_lshrrev_b32 v4, 4, v2")
    k("v_bfe_u32 v5, v2, 2, 2")
    k("v_and_b32 v6, 3, v2")
    k(f"v_lshlrev_b32 v{V_L16}, 4, v2")
    k("v_lshlrev_b32 v7, 2, v4")
    k("v_xor_b32 v7, v3, v7")
    k("v_lshlrev_b32 v7, 4, v7")
    k(f"v_lshl_add_u32 v{V_OW}, v4, 13, v7")
    k("s_waitcnt lgkmcnt(0)")
    k(f"s_lshl_b32 s{S_T}, s{S_HEAD}, 8")
    srd(k, S_WQ, 44, 640 * 8192 - 31 * 256, f"s{S_T}")
    k(f"s_lshl_b32 s{S_T}, s{S_QB}, 2")
    k(f"s_add_u32 s{S_T}, s{S_T}, s{S_WAVE}")
    k(f"s_mul_i32 s{S_T2}, s{S_T}, 81920")
    srd(k, S_XN, 46, 81920, f"s{S_T2}")
    k(f"s_lshl_b32 s{S_WOFF}, s{S_WAVE}, 16")
    k(f"s_lshl_b32 s{S_M0W}, s{S_WAVE}, 11")
    k(f"s_add_u32 s{S_M0W}, s{S_M0W}, {LDS_W}")

    def qissue_list(ks):
        out = []
        slot = ks & 7
        for jj in range(2):
            out.append(([f"s_add_u32 m0, s{S_M0W}, {slot*8192 + jj*1024}", f"s_add_u32 s{S_T2}, s{S_WOFF}, {(32*ks + 4*jj)*8192}"],
                        f"buffer_load_dwordx4 v{V_OW}, s[{S_WQ}:{S_WQ+3}], s{S_T2} offen lds", ("w", ks)))
        for qb in range(4):
            pre = [f"s_mov_b32 s{S_T2+1}, {ks*4096}"] if qb == 0 else []
            out.append((pre, f"buffer_load_dwordx4 {ar(A_XR + slot*16 + 4*qb, 4)}, v{V_L16}, s[{S_XN}:{S_XN+3}], s{S_T2+1} offen offset:{1024*qb}", ("x", ks)))
        return out

    QD = 6
    for ks in range(QD):
        for pre, txt, tag in qissue_list(ks):
            for p in pre:
                k(p)
            k.vmem(txt, tag)
    k(f"s_lshl_b32 s{S_T2}, s{S_T}, 19")
    k(f"s_add_u32 s{S_T2}, s{S_T2}, {O_OFF}")
    srd(k, S_O, 46, 524288, f"s{S_T2}")
    k(f"s_lshl_b32 s{S_T}, s{S_HEAD}, 19")
    srd(k, S_K, 40, 524288, f"s{S_T}")
    srd(k, S_V, 42, 524288, f"s{S_T}")
    k(f"s_lshl_b32 s{S_M0K}, s{S_WAVE}, 12")
    k(f"s_add_u32 s{S_M0V}, s{S_M0K}, {LDS_V}")
    k(f"s_mov_b32 s{S_RERUN}, 0")
    for ks in range(4):
        k(f"v_add_u32 v7, {4*ks}, v4")
        k("v_xor_b32 v7, v7, v3")
        k("v_lshlrev_b32 v7, 4, v7")
        k(f"v_lshl_add_u32 v{V_AK+ks}, v3, 8, v7")
    k("v_lshrrev_b32 v8, 2, v2")
    k("v_lshlrev_b32 v9, 8, v8")
    k("v_lshl_add_u32 v9, v6, 3, v9")
    k(f"v_add_u32 v9, {LDS_V}, v9")
    k("v_and_b32 v8, 7, v8")
    for db in range(8):
        k(f"v_xor_b32 v7, {db}, v8")
        k(f"v_lshl_add_u32 v{V_AV+db}, v7, 5, v9")
    k(f"v_lshlrev_b32 v9, 8, v4")
    k(f"v_add_u32 v9, s{S_M0K}, v9")
    for j in range(4):
        k(f"v_add_u32 v7, {4*j}, v4")
        k("v_xor_b32 v7, v7, v3")
        k(f"v_lshl_add_u32 v{V_OK+j}, v7, 4, v9")
    for p in range(2):
        k(f"v_add_u32 v7, {4*p}, v4")
        k("v_lshlrev_b32 v7, 1, v7")
        k("v_xor_b32 v7, v7, v3")
        k(f"v_lshl_add_u32 v{V_OV+p}, v7, 4, v9")
    k("v_lshl_add_u32 v9, v4, 3, v5")
    k("v_lshlrev_b32 v9, 8, v9")
    k("v_lshl_add_u32 v9, v6, 4, v9")
    k(f"v_add_u32 v9, {LDS_W}, v9")
    for n in range(4):
        k(f"v_xor_b32 v7, {n}, v5")
        k(f"v_lshl_add_u32 v{V_AW+n}, v7, 6, v9")
    for i in range(4):
        k(f"v_mov_b32 v{V_ONES+i}, 0x3f803f80")
        k(f"v_mov_b32 v{V_LACC+i}, 0")
    for i in range(16):
        k(f"v_mov_b32 v{V_NEGM+i}, 0")

    def wread(nt, h, ks):
        off = (ks & 7) * 8192 + (nt & 1) * 8 + h * 1024
        return f"ds_read_b64_tr_b16 {ar(A_WF + 4*nt + 2*h, 2)}, v{V_AW + (nt >> 1)} offset:{off}"

    k.wait_vm(lambda t: t in (("w", 0), ("x", 0)))
    k("s_barrier")
    for nt in range(8):
        for h in range(2):
            k.lds(wread(nt, h, 0), ("W", 0, nt))
    kvplan = {8: ("K", 0), 10: ("K", 1), 12: ("V", 0), 14: ("K", 2), 16: ("V", 1)}
    k(f"s_waitcnt lgkmcnt({k.lg_n(lambda x: x == ('W', 0, 0))})")
    for ks in range(20):
        NG = 32
        mf = [None] * NG
        sc = [[] for _ in range(NG)]
        vec = [[] for _ in range(NG)]
        for nt in range(8):
            for qb in range(4):
                d = vr(V_QACC + 4 * (nt * 4 + qb), 4)
                mf[4 * nt + qb] = mfma16(d, ar(A_WF + 4 * nt, 4), ar(A_XR + (ks & 7) * 16 + 4 * qb, 4), "0" if ks == 0 else d)
        if ks + 1 < 20:
            sc[0].append(lambda ks=ks: k.wait_vm(lambda t: t in (("w", ks + 1), ("x", ks + 1))))
            sc[1].append("s_barrier")
            for nt in range(8):
                vec[4 * nt + 3].append(("ds", wread(nt, 0, ks + 1), ("W", ks + 1, nt)))
                vec[4 * nt + 3].append(("ds", wread(nt, 1, ks + 1), ("W", ks + 1, nt)))
        for nt in range(1, 8):
            sc[4 * nt - 2].append(lambda ks=ks, nt=nt: k(f"s_waitcnt lgkmcnt({k.lg_n(lambda x: x == ('W', ks, nt))})"))
        if ks + 1 < 20:
            sc[30].append(lambda ks=ks: k(f"s_waitcnt lgkmcnt({k.lg_n(lambda x: x == ('W', ks + 1, 0))})"))
        loads = []
        if ks + QD < 20:
            loads += qissue_list(ks + QD)
        if ks in kvplan:
            which, tile = kvplan[ks]
            m0b, off, f = (S_M0K, S_KOFF, dma_k) if which == "K" else (S_M0V, S_VOFF, dma_v)
            for j in range(4):
                pre = [f"s_add_u32 m0, s{m0b}, {(tile & 3)*TILE}", f"s_mov_b32 s{off}, {tile*TILE}"] if j == 0 else []
                loads.append((pre, f(j), (which, tile)))
        slots = [5, 9, 13, 17, 21, 25, 29, 8, 12, 16, 20, 24]
        slots = sorted(slots[: len(loads)])
        for g, (pre, txt, tag) in zip(slots, loads):
            for n, p in enumerate(pre):
                (sc[g - 1] if n == 0 and len(pre) > 1 else sc[g]).append(p)
            if len(pre) == 1 and "m0" in pre[0]:
                sc[g].append("s_nop 0")
            vec[g].append(("vm", txt, tag))
        emit_gaps(k, mf, sc, vec)
    k(f"v_mov_b32 v8, {f2u(QSCALE)}")
    k(f"v_mov_b32 v9, {f2u(QSCALE)}")
    k("s_nop 5")
    for qb in range(4):
        for ksq in range(4):
            for t in range(2):
                d = V_QACC + 4 * ((2 * ksq + t) * 4 + qb)
                k(f"v_pk_mul_f32 v[{d}:{d+1}], v[{d}:{d+1}], v[8:9]")
                k(f"v_pk_mul_f32 v[{d+2}:{d+3}], v[{d+2}:{d+3}], v[8:9]")
            for t in range(2):
                d = V_QACC + 4 * ((2 * ksq + t) * 4 + qb)
                q = V_Q + 4 * (qb * 4 + ksq) + 2 * t
                k(f"v_cvt_pk_bf16_f32 v{q}, v{d}, v{d+1}")
                k(f"v_cvt_pk_bf16_f32 v{q+1}, v{d+2}, v{d+3}")
    k.label("ATT_START")
    k(f"s_mov_b32 s{S_KOFF}, {3*TILE}")
    k(f"s_mov_b32 s{S_VOFF}, {2*TILE}")
    k.wait_vm(lambda t: t == ("K", 0))
    k("s_barrier")
    for f in range(8):
        k.lds(kread(f, 0), ("K", 0, f))
    for f in range(8):
        kt, ks = f >> 2, f & 3
        k(f"s_waitcnt lgkmcnt({k.lg_n(lambda x: x == ('K', 0, f))})")
        for qb in range(4):
            c = vr(V_NEGM + 4 * qb, 4) if ks == 0 else Sreg(0, kt, qb)
            k(mfma16(Sreg(0, kt, qb), ar(A_KF + 4 * f, 4), Qreg(qb, ks), c))
        k.lds(kread(f, 1), ("K", 1))
    k(f"s_cmp_lg_u32 s{S_RERUN}, 0")
    k("s_nop 6")
    k("s_cbranch_scc1 ATT_SKIPM")
    for qb in range(4):
        s = V_S[0] + 8 * qb
        k(f"v_max3_f32 v{4+qb}, v{s}, v{s+1}, v{s+2}")
        k(f"v_max3_f32 v{4+qb}, v{4+qb}, v{s+3}, v{s+4}")
        k(f"v_max3_f32 v{4+qb}, v{4+qb}, v{s+5}, v{s+6}")
        k(f"v_max_f32 v{4+qb}, v{4+qb}, v{s+7}")
    xlane(k, "v_max_f32", [4, 5, 6, 7], 60)
    for qb in range(4):
        for r in range(4):
            k(f"v_sub_f32 v{V_NEGM + 4*qb + r}, 0, v{4+qb}")
        for e in range(8):
            s = V_S[0] + 8 * qb + e
            k(f"v_sub_f32 v{s}, v{s}, v{4+qb}")
    k.label("ATT_SKIPM")
    k("s_waitcnt lgkmcnt(0)")
    k("s_nop 0")
    for i in range(8):
        emit_gaps(k, *step(k, i, first_pv=(i == 1)))
    k(f"s_mov_b32 s{S_CNT}, 6")
    k(".p2align 6")
    k.label("ATT_LOOP")
    for i in range(8, 16):
        mf, sc, vec = step(k, i)
        if i == 15:
            sc[60].append(f"s_sub_u32 s{S_CNT}, s{S_CNT}, 1")
            sc[62].append(f"s_cmp_lg_u32 s{S_CNT}, 0")
        emit_gaps(k, mf, sc, vec)
    k("s_cbranch_scc1 ATT_LOOP")
    k.vm = [(t[0], t[1] + 20) if t[0] in "KV" else t for t in k.vm]
    k.lg = [(t[0], t[1] + 40) + tuple(t[2:]) if t[0] in "KV" else t for t in k.lg]
    for i in range(56, 65):
        emit_gaps(k, *step(k, i))
    k(f"v_add_f32 v4, v{V_LACC}, v{V_LACC+1}")
    k(f"v_add_f32 v5, v{V_LACC+2}, v{V_LACC+3}")
    xlane(k, "v_add_f32", [4, 5], 60)
    k(f"v_accvgpr_read_b32 v6, a{A_L}")
    k(f"v_accvgpr_read_b32 v7, a{A_L+4}")
    k(f"s_cmp_lg_u32 s{S_RERUN}, 0")
    k("s_cbranch_scc1 ATT_EPI")
    k("v_max3_f32 v8, v4, v5, v6")
    k("v_max_f32 v8, v8, v7")
    k("v_add_f32 v9, v4, v5")
    k("v_add_f32 v60, v6, v7")
    k("v_add_f32 v9, v9, v60")
    k(f"v_mov_b32 v60, {f2u(2.0**40)}")
    k("v_cmp_nlt_f32 vcc, v9, v60")
    k("s_cmp_lg_u64 vcc, 0")
    k(f"s_cselect_b32 s{S_T}, 1, 0")
    k(f"v_mov_b32 v8, s{S_T}")
    k(f"s_lshl_b32 s{S_T}, s{S_WAVE}, 2")
    k(f"s_add_u32 s{S_T}, s{S_T}, {LDS_FLAG}")
    k(f"v_mov_b32 v9, s{S_T}")
    k("ds_write_b32 v9, v8")
    k(f"v_mov_b32 v9, {LDS_FLAG}")
    k("s_waitcnt lgkmcnt(0)")
    k("s_barrier")
    k("ds_read_b128 v[60:63], v9")
    k("s_waitcnt lgkmcnt(0)")
    k("v_or_b32 v60, v60, v61")
    k("v_or_b32 v62, v62, v63")
    k("v_or_b32 v60, v60, v62")
    k("s_nop 0")
    k(f"v_readfirstlane_b32 s{S_T}, v60")
    k("s_nop 3")
    k(f"s_cmp_lg_u32 s{S_T}, 0")
    k("s_cbranch_scc1 ATT_FALLBACK")
    k.label("ATT_EPI")
    for qb in range(4):
        k(f"v_rcp_f32 v{4+qb}, v{4+qb}")
    k(f"s_lshl_b32 s{S_T}, s{S_HEAD}, 14")
    for qb in range(4):
        k(f"v_mov_b32 v{60}, v{4+qb}")
        k(f"v_mov_b32 v{61}, v{4+qb}")
        for dbp in range(4):
            t = 64 + 16 * dbp + 64 * (qb & 1)
            for h in range(2):
                for r in range(4):
                    k(f"v_accvgpr_read_b32 v{t + 4*h + r}, a{A_O + 4*((2*dbp + h)*4 + qb) + r}")
            for j in range(4):
                k(f"v_pk_mul_f32 v[{t+2*j}:{t+2*j+1}], v[{t+2*j}:{t+2*j+1}], v[60:61]")
            for j in range(4):
                k(f"v_cvt_pk_bf16_f32 v{t+8+j}, v{t+2*j}, v{t+2*j+1}")
            k(f"s_add_u32 s{S_T2}, s{S_T}, {dbp*4096}")
            k(f"buffer_store_dwordx4 v[{t+8}:{t+11}], v{V_L16}, s[{S_O}:{S_O+3}], s{S_T2} offen offset:{qb*1024}")
    k.label("ATT_END")
    k("s_endpgm")
    k.label("ATT_FALLBACK")
    for qb in range(4):
        k(f"v_mov_b32 v{4+qb}, 0xff800000")
    k(f"s_mov_b32 s{S_KOFF}, 0")
    k(f"s_mov_b32 m0, s{S_M0K}")
    k.label("ATT_FB_LOOP")
    k("s_barrier")
    for j in range(4):
        k(dma_k(j))
    k("s_waitcnt vmcnt(0)")
    k("s_barrier")
    for half in range(2):
        for f in range(8):
            k(kread(f, half))
        k("s_waitcnt lgkmcnt(0)")
        for f in range(8):
            kt, ks = f >> 2, f & 3
            for qb in range(4):
                c = "0" if ks == 0 else Sreg(0, kt, qb)
                k(mfma16(Sreg(0, kt, qb), ar(A_KF + 4 * f, 4), Qreg(qb, ks), c))
        k("s_nop 7")
        for qb in range(4):
            s = V_S[0] + 8 * qb
            for e in range(0, 8, 2):
                k(f"v_max3_f32 v{4+qb}, v{4+qb}, v{s+e}, v{s+e+1}")
    k(f"s_add_u32 s{S_KOFF}, s{S_KOFF}, {TILE}")
    k(f"s_cmp_lt_u32 s{S_KOFF}, {32*TILE}")
    k("s_cbranch_scc1 ATT_FB_LOOP")
    xlane(k, "v_max_f32", [4, 5, 6, 7], 60)
    for qb in range(4):
        for r in range(4):
            k(f"v_sub_f32 v{V_NEGM + 4*qb + r}, 0, v{4+qb}")
    for i in range(4):
        k(f"v_mov_b32 v{V_LACC+i}, 0")
    k("s_barrier")
    for which, tile in (("K", 0), ("K", 1), ("V", 0), ("K", 2), ("V", 1)):
        issue_tile_simple(k, which, tile)
    k(f"s_mov_b32 s{S_RERUN}, 1")
    k("s_waitcnt vmcnt(0)")
    k("s_branch ATT_START")
    return k, 512, 256, (256, 256, 163840)
```

```python
import sys
from asmlib import *

from common import *


def wave_sum(k, v, s):
    for m in ("row_shr:1", "row_shr:2", "row_shr:4", "row_shr:8"):
        k("s_nop 1")
        k(f"v_add_f32_dpp v{v}, v{v}, v{v} {m} row_mask:0xf bank_mask:0xf")
    k("s_nop 1")
    k(f"v_add_f32_dpp v{v}, v{v}, v{v} row_bcast:15 row_mask:0xa bank_mask:0xf")
    k("s_nop 1")
    k(f"v_add_f32_dpp v{v}, v{v}, v{v} row_bcast:31 row_mask:0xc bank_mask:0xf")
    k("s_nop 0")
    k(f"v_readlane_b32 s{s}, v{v}, 63")
    k("s_nop 1")


def rnd1(k, v):
    k(f"v_cvt_pk_bf16_f32 v{v}, v{v}, v{v}")
    k(f"v_and_b32 v{v}, 0xffff0000, v{v}")


LN_PITCH = 1296
N_UNITS = 1280 + 1728
PREP_WGS = 256 + (N_UNITS + 7) // 8


def ln_once(k, xs, packed):
    t, d = 30, 32
    k(f"v_add_f32 v{t}, v{xs}, v{xs+1}")
    for i in range(2, 10):
        k(f"v_add_f32 v{t}, v{t}, v{xs+i}")
    wave_sum(k, t, 24)
    k(f"v_mov_b32 v{t+1}, {f2u(1.0/640)}")
    k(f"v_mul_f32 v{t+1}, s24, v{t+1}")
    k(f"v_sub_f32 v{d}, v{xs}, v{t+1}")
    k(f"v_mul_f32 v{t}, v{d}, v{d}")
    for i in range(1, 10):
        k(f"v_sub_f32 v{d}, v{xs+i}, v{t+1}")
        k(f"v_fmac_f32 v{t}, v{d}, v{d}")
    wave_sum(k, t, 24)
    k(f"v_mov_b32 v{t}, {f2u(1.0/640)}")
    k(f"v_mul_f32 v{t}, s24, v{t}")
    rnd1(k, t + 1)
    rnd1(k, t)
    k(f"v_add_f32 v{t}, {f2u(1e-5)}, v{t}")
    rnd1(k, t)
    k(f"v_sqrt_f32 v{t}, v{t}")
    k("s_nop 0")
    rnd1(k, t)
    k(f"v_rcp_f32 v{t}, v{t}")
    for i in range(10):
        k(f"v_sub_f32 v{xs+i}, v{xs+i}, v{t+1}")
    for i in range(5):
        k(f"v_cvt_pk_bf16_f32 v{packed+i}, v{xs+2*i}, v{xs+2*i+1}")
    for i in range(5):
        k(f"v_lshlrev_b32 v{xs+2*i}, 16, v{packed+i}")
        k(f"v_and_b32 v{xs+2*i+1}, 0xffff0000, v{packed+i}")
    for i in range(10):
        k(f"v_mul_f32 v{xs+i}, v{xs+i}, v{t}")
    for i in range(5):
        k(f"v_cvt_pk_bf16_f32 v{packed+i}, v{xs+2*i}, v{xs+2*i+1}")
    for i in range(5):
        k(f"v_lshlrev_b32 v{xs+2*i}, 16, v{packed+i}")
        k(f"v_and_b32 v{xs+2*i+1}, 0xffff0000, v{packed+i}")


def gen_prep():
    k = K("prep_kernel")
    k(f"s_cmp_ge_u32 s2, {PREP_WGS}")
    k("s_cbranch_scc1 PREP_END")
    k(f"s_load_dwordx2 s[4:5], s[0:1], {A_X}")
    k(f"s_load_dwordx2 s[6:7], s[0:1], {A_WO}")
    k(f"s_load_dwordx2 s[8:9], s[0:1], {A_W2}")
    k(f"s_load_dwordx2 s[10:11], s[0:1], {A_WS}")
    k("v_lshrrev_b32 v1, 6, v0")
    k("v_and_b32 v2, 63, v0")
    k("v_readfirstlane_b32 s12, v1")
    k("s_waitcnt lgkmcnt(0)")
    srd(k, 20, 10, WS_END)
    k("s_cmp_ge_u32 s2, 256")
    k("s_cbranch_scc1 PREP_REPACK")
    srd(k, 16, 4, 2048 * 1280)
    k("s_lshl_b32 s13, s2, 3")
    k("s_add_u32 s13, s13, s12")
    k("s_mul_i32 s14, s13, 1280")
    k("v_lshlrev_b32 v3, 2, v2")
    for i in range(5):
        k(f"buffer_load_dword v{10+i}, v3, s[16:19], s14 offen offset:{256*i}")
    k(f"s_mul_i32 s15, s12, {LN_PITCH}")
    k("v_add_u32 v4, s15, v3")
    k("s_waitcnt vmcnt(0)")
    for i in range(5):
        k(f"v_lshlrev_b32 v{20+2*i}, 16, v{10+i}")
        k(f"v_and_b32 v{21+2*i}, 0xffff0000, v{10+i}")
    ln_once(k, 20, 10)
    for i in range(5):
        k(f"ds_write_b32 v4, v{10+i} offset:{256*i}")
    ln_once(k, 20, 40)
    HB = 8 * LN_PITCH
    for i in range(5):
        k(f"ds_write_b32 v4, v{40+i} offset:{HB + 256*i}")
    k("s_lshr_b32 s25, s2, 3")
    k("s_mul_i32 s25, s25, 81920")
    k("s_lshr_b32 s26, s2, 1")
    k("s_and_b32 s26, s26, 3")
    k("s_lshl_b32 s26, s26, 10")
    k("s_add_u32 s25, s25, s26")
    k("s_and_b32 s26, s2, 1")
    k("s_lshl_b32 s26, s26, 7")
    k("s_add_u32 s25, s25, s26")
    k("s_lshr_b32 s26, s2, 2")
    k("s_mul_i32 s26, s26, 5120")
    k("s_and_b32 s27, s2, 3")
    k("s_lshl_b32 s27, s27, 8")
    k("s_add_u32 s26, s26, s27")
    k(f"s_add_u32 s26, s26, {H_OFF}")
    k("s_waitcnt lgkmcnt(0)")
    k("s_barrier")

    def xn_piece(pv):
        k(f"v_and_b32 v5, 7, v{pv}")
        k(f"v_lshrrev_b32 v6, 3, v{pv}")
        k(f"v_mul_u32_u24 v7, {LN_PITCH}, v5")
        k("v_lshl_add_u32 v7, v6, 4, v7")
        k("ds_read_b128 v[12:15], v7")
        k("v_lshrrev_b32 v8, 2, v6")
        k("v_lshlrev_b32 v8, 12, v8")
        k("v_and_b32 v6, 3, v6")
        k("v_lshl_add_u32 v8, v6, 8, v8")
        k("v_lshl_add_u32 v8, v5, 4, v8")
        k("s_waitcnt lgkmcnt(0)")
        k("buffer_store_dwordx4 v[12:15], v8, s[20:23], s25 offen")

    def h_piece(sw):
        k("v_lshrrev_b32 v5, 4, v2")
        k(f"s_lshl_b32 s28, s{sw}, 2")
        k("v_add_u32 v5, s28, v5")
        k("v_bfe_u32 v6, v2, 2, 2")
        k("v_and_b32 v7, 3, v2")
        k(f"v_mul_u32_u24 v6, {LN_PITCH}, v6")
        k("v_lshl_add_u32 v6, v5, 5, v6")
        k("v_lshl_add_u32 v6, v7, 3, v6")
        k(f"ds_read_b64_tr_b16 v[16:17], v6 offset:{HB}")
        k(f"ds_read_b64_tr_b16 v[18:19], v6 offset:{HB + 4*LN_PITCH}")
        k("v_mul_u32_u24 v7, 205, v5")
        k("v_lshrrev_b32 v7, 10, v7")
        k("v_mul_u32_u24 v8, 5, v7")
        k("v_sub_u32 v8, v5, v8")
        k("v_mul_u32_u24 v7, 327680, v7")
        k("v_lshl_add_u32 v7, v8, 10, v7")
        k("v_and_b32 v8, 15, v2")
        k("v_lshl_add_u32 v7, v8, 4, v7")
        k("s_waitcnt lgkmcnt(0)")
        k("buffer_store_dwordx4 v[16:19], v7, s[20:23], s26 offen")

    xn_piece(0)
    h_piece(12)
    k("s_cmp_ge_u32 s12, 4")
    k("s_cbranch_scc1 PREP_END")
    k("s_cmp_ge_u32 s12, 2")
    k("s_cbranch_scc1 PREP_H2")
    k("v_add_u32 v9, 512, v0")
    k("s_nop 1")
    xn_piece(9)
    k("s_endpgm")
    k.label("PREP_H2")
    k("s_add_u32 s29, s12, 6")
    k("s_nop 1")
    h_piece(29)
    k("s_endpgm")
    k.label("PREP_REPACK")
    k("s_sub_u32 s13, s2, 256")
    k("s_lshl_b32 s13, s13, 3")
    k("s_add_u32 s13, s13, s12")
    k(f"s_cmp_ge_u32 s13, {N_UNITS}")
    k("s_cbranch_scc1 PREP_END")
    k("s_cmp_ge_u32 s13, 1280")
    k("s_cbranch_scc1 PREP_RW2")
    srd(k, 16, 6, 4096 * 1280)
    k("s_mul_i32 s14, s13, 6554")
    k("s_lshr_b32 s14, s14, 16")
    k("s_mul_i32 s15, s14, 10")
    k("s_sub_u32 s15, s13, s15")
    k("s_mul_i32 s24, s14, 40960")
    k("s_lshl_b32 s25, s15, 7")
    k("s_add_u32 s24, s24, s25")
    k("s_mov_b32 s25, 1280")
    for i in range(4):
        k("s_lshl_b32 s26, s15, 2")
        k(f"s_add_u32 s26, s26, {i}")
        k("s_mul_i32 s27, s26, 205")
        k("s_lshr_b32 s27, s27, 10")
        k("s_mul_i32 s28, s27, 5")
        k("s_sub_u32 s26, s26, s28")
        k("s_lshl_b32 s27, s27, 7")
        k("s_add_u32 s27, s27, s14")
        k("s_mul_i32 s27, s27, 5")
        k("s_add_u32 s27, s27, s26")
        k("s_lshl_b32 s27, s27, 10")
        k(f"s_add_u32 s{30+i}, s27, {WO_OFF}")
    k("s_branch PREP_RGO")
    k.label("PREP_RW2")
    srd(k, 16, 8, 1728 * 4096)
    k("s_sub_u32 s13, s13, 1280")
    k("s_lshr_b32 s14, s13, 5")
    k("s_and_b32 s15, s13, 31")
    k("s_lshl_b32 s24, s14, 17")
    k("s_lshl_b32 s25, s15, 7")
    k("s_add_u32 s24, s24, s25")
    k("s_mov_b32 s25, 4096")
    k("s_mul_i32 s27, s15, 54")
    k("s_add_u32 s27, s27, s14")
    k("s_lshl_b32 s27, s27, 12")
    for i in range(4):
        k(f"s_add_u32 s{30+i}, s27, {W2_OFF + 1024*i}")
    k.label("PREP_RGO")
    k("v_lshrrev_b32 v3, 3, v2")
    k("v_bfe_u32 v4, v2, 1, 2")
    k("v_bfe_u32 v5, v2, 4, 2")
    k("v_xor_b32 v4, v4, v5")
    k("v_and_b32 v5, 1, v2")
    k("v_lshl_add_u32 v4, v4, 1, v5")
    k("v_mul_lo_u32 v3, v3, s25")
    k("v_lshl_add_u32 v3, v4, 4, v3")
    k("s_lshl_b32 s26, s12, 12")
    k("s_lshl_b32 s25, s25, 3")
    for j in range(4):
        k(f"s_add_u32 m0, s26, {1024*j}")
        k("s_nop 0")
        k("buffer_load_dwordx4 v3, s[16:19], s24 offen lds")
        k("s_add_u32 s24, s24, s25")
    k("v_lshrrev_b32 v4, 2, v2")
    k("v_bfe_u32 v5, v2, 3, 2")
    k("v_and_b32 v6, 3, v2")
    k("v_lshlrev_b32 v4, 7, v4")
    k("v_lshl_add_u32 v4, v6, 3, v4")
    k("v_add_u32 v4, s26, v4")
    for i in range(4):
        k(f"v_xor_b32 v6, {i}, v5")
        k(f"v_lshl_add_u32 v{8+i}, v6, 5, v4")
    k("v_lshlrev_b32 v7, 4, v2")
    k("s_waitcnt vmcnt(0)")
    for i in range(4):
        k(f"ds_read_b64_tr_b16 v[{16+4*i}:{17+4*i}], v{8+i}")
        k(f"ds_read_b64_tr_b16 v[{18+4*i}:{19+4*i}], v{8+i} offset:2048")
    k("s_waitcnt lgkmcnt(0)")
    for i in range(4):
        k(f"buffer_store_dwordx4 v[{16+4*i}:{19+4*i}], v7, s[20:23], s{30+i} offen")
    k.label("PREP_END")
    k("s_endpgm")
    return k, 64, 64, (PREP_WGS, 512, 32768)


def gelu4(k, x, t):
    c0 = -2.0 * 0.7978845608028654 * LOG2E
    c1 = c0 * 0.044715
    k(f"s_mov_b32 s40, {f2u(c1)}")
    for i in range(4):
        k(f"v_mul_f32 v{t+i}, v{x+i}, v{x+i}")
    k(f"v_mov_b32 v{t+4}, {f2u(c0)}")
    for i in range(4):
        k(f"v_fma_f32 v{t+i}, v{t+i}, s40, v{t+4}")
    for i in range(4):
        k(f"v_mul_f32 v{t+i}, v{t+i}, v{x+i}")
    for i in range(4):
        k(f"v_exp_f32 v{t+i}, v{t+i}")
    k("s_nop 0")
    for i in range(4):
        k(f"v_add_f32 v{t+i}, 1.0, v{t+i}")
    for i in range(4):
        k(f"v_rcp_f32 v{t+i}, v{t+i}")
    k("s_nop 0")
    for i in range(4):
        k(f"v_mul_f32 v{x+i}, v{x+i}, v{t+i}")


def rnd4(k, x, t):
    k(f"v_cvt_pk_bf16_f32 v{t}, v{x}, v{x+1}")
    k(f"v_cvt_pk_bf16_f32 v{t+1}, v{x+2}, v{x+3}")
    k(f"v_lshlrev_b32 v{x}, 16, v{t}")
    k(f"v_and_b32 v{x+1}, 0xffff0000, v{t}")
    k(f"v_lshlrev_b32 v{x+2}, 16, v{t+1}")
    k(f"v_and_b32 v{x+3}, 0xffff0000, v{t+1}")


def gen_mlp1():
    k = K("mlp1_kernel")
    D = 6
    NS = D + 1
    WLDS = NS * 4096
    k("s_cmp_ge_u32 s2, 216")
    k("s_cbranch_scc1 MLP1_END")
    k(f"s_load_dwordx2 s[4:5], s[0:1], {A_W1}")
    k(f"s_load_dwordx2 s[6:7], s[0:1], {A_B1}")
    k(f"s_load_dwordx2 s[10:11], s[0:1], {A_WS}")
    k("v_lshrrev_b32 v1, 6, v0")
    k("v_and_b32 v2, 63, v0")
    k("v_readfirstlane_b32 s12, v1")
    k("s_and_b32 s13, s2, 7")
    k("s_mul_i32 s13, s13, 27")
    k("s_lshr_b32 s14, s2, 3")
    k("s_add_u32 s13, s13, s14")
    k("s_lshr_b32 s14, s13, 3")
    k("s_and_b32 s15, s13, 7")
    k("s_waitcnt lgkmcnt(0)")
    srd(k, 16, 4, 2048 * 3456)
    srd(k, 20, 10, WS_END)
    srd(k, 24, 6, 1728 * 2)
    k("s_mul_i32 s28, s12, 110592")
    k("s_lshl_b32 s29, s14, 7")
    k("s_add_u32 s28, s28, s29")
    k("s_lshl_b32 s29, s15, 6")
    k("s_add_u32 s29, s29, s12")
    k("s_mul_i32 s29, s29, 5120")
    k(f"s_add_u32 s29, s29, {H_OFF}")
    k(f"s_mul_i32 s30, s12, {WLDS}")
    k("v_lshrrev_b32 v5, 3, v2")
    k("v_bfe_u32 v6, v2, 1, 2")
    k("v_bfe_u32 v7, v2, 4, 1")
    k("v_xor_b32 v6, v6, v7")
    k("v_and_b32 v7, 1, v2")
    k("v_mul_u32_u24 v5, 3456, v5")
    k("v_lshl_add_u32 v5, v7, 4, v5")
    k("v_lshl_add_u32 v3, v6, 5, v5")
    k("v_xor_b32 v6, 2, v6")
    k("v_lshl_add_u32 v4, v6, 5, v5")
    k("v_lshlrev_b32 v8, 4, v2")
    k("v_add_u32 v9, 4096, v8")
    k("v_lshrrev_b32 v5, 4, v2")
    k("v_bfe_u32 v6, v2, 2, 2")
    k("v_lshl_add_u32 v7, v5, 3, v6")
    k("v_lshlrev_b32 v7, 7, v7")
    k("v_and_b32 v14, 3, v2")
    k("v_lshl_add_u32 v7, v14, 3, v7")
    k("v_add_u32 v7, s30, v7")
    k("v_bfe_u32 v6, v2, 3, 2")
    for i in range(4):
        k(f"v_xor_b32 v14, {i}, v6")
        k(f"v_lshl_add_u32 v{10+i}, v14, 5, v7")
    ACC = 0
    HR = 80
    AF = 16
    for i in range(80):
        k(f"v_accvgpr_write_b32 a{i}, 0")

    def issue(i):
        slot = i % NS
        for j in range(4):
            k(f"s_add_u32 m0, s30, {slot*4096 + j*1024}")
            k(f"s_add_u32 s31, s28, {i*4*110592 + j*8*3456}")
            k.vmem(f"buffer_load_dwordx4 v{3 + (j&1)}, s[16:19], s31 offen lds", ("w", i))
        k(f"s_add_u32 s31, s29, {i*4*5120}")
        for j in range(5):
            b = HR + slot * 20 + 4 * j
            if j < 4:
                k.vmem(f"buffer_load_dwordx4 a[{b}:{b+3}], v8, s[20:23], s31 offen offset:{1024*j}", ("h", i))
            else:
                k.vmem(f"buffer_load_dwordx4 a[{b}:{b+3}], v9, s[20:23], s31 offen", ("h", i))

    k("v_lshrrev_b32 v5, 4, v2")
    k("v_lshlrev_b32 v5, 3, v5")
    k("s_lshl_b32 s32, s14, 7")
    for t in range(4):
        k.vmem(f"buffer_load_dwordx2 v[{32+2*t}:{33+2*t}], v5, s[24:27], s32 offen offset:{32*t}", ("b", 0))
    for i in range(D):
        issue(i)
    for i in range(16):
        if i + D < 16:
            issue(i + D)
        k.wait_vm(lambda t: t[0] in "wh" and t[1] == i)
        slot = i % NS
        for f in range(4):
            k(f"ds_read_b64_tr_b16 v[{AF+4*f}:{AF+4*f+1}], v{10+f} offset:{slot*4096}")
            k(f"ds_read_b64_tr_b16 v[{AF+4*f+2}:{AF+4*f+3}], v{10+f} offset:{slot*4096 + 512}")
        for f in range(4):
            k(f"s_waitcnt lgkmcnt({6 - 2*f})")
            for j in range(5):
                a = ACC + 4 * (f * 5 + j)
                b = HR + slot * 20 + 4 * j
                k(mfma16(ar(a, 4), vr(AF + 4 * f, 4), ar(b, 4), ar(a, 4)))
    k("s_nop 7")
    k("v_add_u32 v5, s30, v8")
    for t in range(20):
        k(f"ds_write_b128 v5, a[{4*t}:{4*t+3}] offset:{1024*t}")
    k("s_waitcnt lgkmcnt(0)")
    k("s_barrier")
    for rnd in range(3):
        if rnd == 2:
            k("s_cmp_ge_u32 s12, 2")
            k("s_cbranch_scc1 MLP1_END")
        k(f"s_add_u32 s33, s12, {4*rnd}")
        k("s_cmp_ge_u32 s33, 5")
        k("s_cselect_b32 s34, 1, 0")
        k("s_mul_i32 s35, s34, 5")
        k("s_sub_u32 s36, s33, s35")
        k("s_mul_i32 s35, s34, 10")
        k("s_add_u32 s35, s35, s36")
        k("s_lshl_b32 s35, s35, 10")
        k("v_add_u32 v5, s35, v8")
        for h in range(2):
            for w in range(4):
                off = w * WLDS + h * 5120
                if off < 65536:
                    k(f"ds_read_b128 v[{48+16*h+4*w}:{51+16*h+4*w}], v5 offset:{off}")
                else:
                    k(f"v_add_u32 v6, {w*WLDS}, v5")
                    k(f"ds_read_b128 v[{48+16*h+4*w}:{51+16*h+4*w}], v6 offset:{h*5120}")
        k("s_cmp_eq_u32 s34, 0")
        k("s_cselect_b64 vcc, -1, 0")
        k("s_waitcnt vmcnt(0)")
        for i in range(4):
            k(f"v_cndmask_b32 v{40+i}, v{36+i}, v{32+i}, vcc")
        k("s_waitcnt lgkmcnt(0)")
        for h in range(2):
            b = 48 + 16 * h
            for i in range(4):
                k(f"v_add_f32 v{b+i}, v{b+i}, v{b+4+i}")
                k(f"v_add_f32 v{b+8+i}, v{b+8+i}, v{b+12+i}")
            for i in range(4):
                k(f"v_add_f32 v{b+i}, v{b+i}, v{b+8+i}")
            rnd4(k, b, 80)
            k(f"v_lshlrev_b32 v80, 16, v{40+2*h}")
            k(f"v_and_b32 v81, 0xffff0000, v{40+2*h}")
            k(f"v_lshlrev_b32 v82, 16, v{41+2*h}")
            k(f"v_and_b32 v83, 0xffff0000, v{41+2*h}")
            for i in range(4):
                k(f"v_add_f32 v{b+i}, v{b+i}, v{80+i}")
            rnd4(k, b, 80)
            gelu4(k, b, 80)
            k(f"v_cvt_pk_bf16_f32 v{88+2*h}, v{b}, v{b+1}")
            k(f"v_cvt_pk_bf16_f32 v{89+2*h}, v{b+2}, v{b+3}")
        k("s_mul_i32 s35, s15, 54")
        k("s_lshl_b32 s37, s14, 1")
        k("s_add_u32 s35, s35, s37")
        k("s_add_u32 s35, s35, s34")
        k("s_mul_i32 s35, s35, 5")
        k("s_add_u32 s35, s35, s36")
        k("s_lshl_b32 s35, s35, 10")
        k(f"s_add_u32 s35, s35, {U_OFF}")
        k("buffer_store_dwordx4 v[88:91], v8, s[20:23], s35 offen")
        k("s_nop 1")
    k.label("MLP1_END")
    k("s_endpgm")
    return k, 96 + 220, 96, (216, 256, 4 * WLDS)


def gen_final():
    k = K("final_kernel")
    D = 6
    NS = D + 1
    k("s_cmp_ge_u32 s2, 256")
    k("s_cbranch_scc1 FIN_END")
    k(f"s_load_dwordx2 s[4:5], s[0:1], {A_X}")
    k(f"s_load_dwordx2 s[6:7], s[0:1], {A_B2}")
    k(f"s_load_dwordx2 s[8:9], s[0:1], {A_OUT}")
    k(f"s_load_dwordx2 s[10:11], s[0:1], {A_WS}")
    k("v_lshrrev_b32 v1, 6, v0")
    k("v_and_b32 v2, 63, v0")
    k("v_readfirstlane_b32 s12, v1")
    k("s_and_b32 s13, s2, 7")
    k("s_lshr_b32 s14, s2, 3")
    k("s_lshr_b32 s15, s13, 1")
    k("s_lshl_b32 s15, s15, 3")
    k("s_lshr_b32 s40, s14, 2")
    k("s_add_u32 s15, s15, s40")
    k("s_and_b32 s13, s13, 1")
    k("s_lshl_b32 s13, s13, 2")
    k("s_and_b32 s14, s14, 3")
    k("s_add_u32 s14, s14, s13")
    k("s_waitcnt lgkmcnt(0)")
    k("s_mul_i32 s40, s14, 276480")
    k(f"s_add_u32 s40, s40, {U_OFF}")
    srd(k, 16, 10, 54 * 5120, "s40")
    k("s_mul_i32 s40, s15, 221184")
    k(f"s_add_u32 s40, s40, {W2_OFF}")
    srd(k, 20, 10, 54 * 4096, "s40")
    k("s_mul_i32 s40, s14, 655360")
    k(f"s_add_u32 s40, s40, {WO_OFF}")
    srd(k, 24, 10, 128 * 5120, "s40")
    k("s_lshl_b32 s40, s15, 19")
    k(f"s_add_u32 s40, s40, {O_OFF}")
    srd(k, 28, 10, 128 * 4096, "s40")
    srd(k, 32, 4, 2048 * 1280)
    srd(k, 36, 8, 2048 * 1280)
    srd(k, 44, 6, 2048 * 2)
    k("s_mul_i32 s41, s12, 5120")
    k("s_lshl_b32 s42, s12, 12")
    k("v_lshlrev_b32 v8, 4, v2")
    k("v_add_u32 v9, 4096, v8")
    k("v_and_b32 v3, 15, v2")
    k("s_lshl_b32 s43, s15, 2")
    k("s_add_u32 s43, s43, s12")
    k("s_lshl_b32 s43, s43, 4")
    k("v_add_u32 v3, s43, v3")
    k("v_lshlrev_b32 v4, 1, v3")
    k("v_mul_u32_u24 v3, 1280, v3")
    k("v_lshrrev_b32 v5, 4, v2")
    k("v_lshl_add_u32 v3, v5, 3, v3")
    k("s_mul_i32 s43, s14, 160")
    for t in range(5):
        k.vmem(f"buffer_load_dwordx2 v[{20+2*t}:{21+2*t}], v3, s[32:35], s43 offen offset:{32*t}", ("x", 0))
    k.vmem("buffer_load_ushort v30, v4, s[44:47], 0 offen", ("x", 0))
    YA = 0
    SA = 80
    for i in range(160):
        k(f"v_accvgpr_write_b32 a{i}, 0")

    def ring(slot, j):
        if slot < 2:
            return ar(160 + slot * 36 + 4 * j, 4)
        return vr(40 + (slot - 2) * 36 + 4 * j, 4)

    NY, NO = 14, 32
    steps = [("y", i) for i in range(NY)] + [("o", i) for i in range(NO)]

    def issue(n):
        kind, i = steps[n]
        slot = n % NS
        sa, sb = (16, 20) if kind == "y" else (24, 28)
        k(f"s_add_u32 s48, s41, {i*4*5120}")
        k(f"s_add_u32 s49, s42, {i*4*4096}")
        for j in range(5):
            if j < 4:
                k.vmem(f"buffer_load_dwordx4 {ring(slot,j)}, v8, s[{sa}:{sa+3}], s48 offen offset:{1024*j}", ("k", n))
            else:
                k.vmem(f"buffer_load_dwordx4 {ring(slot,j)}, v9, s[{sa}:{sa+3}], s48 offen", ("k", n))
        for j in range(4):
            k.vmem(f"buffer_load_dwordx4 {ring(slot,5+j)}, v8, s[{sb}:{sb+3}], s49 offen offset:{1024*j}", ("k", n))

    for n in range(D):
        issue(n)
    for n in range(len(steps)):
        if n + D < len(steps):
            issue(n + D)
        k.wait_vm(lambda t: t == ("k", n))
        kind, i = steps[n]
        slot = n % NS
        base = YA if kind == "y" else SA
        for dt in range(5):
            for st in range(4):
                a = base + 4 * (dt * 4 + st)
                k(mfma16(ar(a, 4), ring(slot, dt), ring(slot, 5 + st), ar(a, 4)))
    k("s_nop 7")
    k("s_mul_i32 s48, s12, 10240")
    k("v_add_u32 v5, s48, v8")
    for st in range(4):
        k(f"v_add_u32 v6, {st*40960}, v5")
        for p in range(2):
            for dt in range(5):
                a = (YA if p == 0 else SA) + 4 * (dt * 4 + st)
                k(f"ds_write_b128 v6, a[{a}:{a+3}] offset:{(p*5+dt)*1024}")
    k("s_waitcnt lgkmcnt(0)")
    k("s_barrier")
    k("s_mul_i32 s48, s12, 40960")
    k("v_add_u32 v5, s48, v8")
    k("v_lshlrev_b32 v30, 16, v30")
    for dt in range(5):
        for p in range(2):
            for w in range(4):
                b = 40 + 16 * p + 4 * w
                k(f"ds_read_b128 v[{b}:{b+3}], v5 offset:{(w*10 + p*5 + dt)*1024}")
        k("s_waitcnt lgkmcnt(0)")
        for p in range(2):
            b = 40 + 16 * p
            for i in range(4):
                k(f"v_add_f32 v{b+i}, v{b+i}, v{b+4+i}")
                k(f"v_add_f32 v{b+8+i}, v{b+8+i}, v{b+12+i}")
            for i in range(4):
                k(f"v_add_f32 v{b+i}, v{b+i}, v{b+8+i}")
            rnd4(k, b, 80)
        for i in range(4):
            k(f"v_add_f32 v{40+i}, v{40+i}, v30")
        rnd4(k, 40, 80)
        k(f"s_mov_b32 s40, {f2u(-LOG2E)}")
        for i in range(4):
            k(f"v_mul_f32 v{80+i}, s40, v{40+i}")
        for i in range(4):
            k(f"v_exp_f32 v{80+i}, v{80+i}")
        k("s_nop 0")
        for i in range(4):
            k(f"v_add_f32 v{80+i}, 1.0, v{80+i}")
        for i in range(4):
            k(f"v_rcp_f32 v{80+i}, v{80+i}")
        k("s_nop 0")
        for i in range(4):
            k(f"v_mul_f32 v{40+i}, v{40+i}, v{80+i}")
        rnd4(k, 40, 80)
        for i in range(4):
            k(f"v_mul_f32 v{40+i}, v{40+i}, v{56+i}")
        rnd4(k, 40, 80)
        k(f"v_lshlrev_b32 v80, 16, v{20+2*dt}")
        k(f"v_and_b32 v81, 0xffff0000, v{20+2*dt}")
        k(f"v_lshlrev_b32 v82, 16, v{21+2*dt}")
        k(f"v_and_b32 v83, 0xffff0000, v{21+2*dt}")
        for i in range(4):
            k(f"v_add_f32 v{40+i}, v{40+i}, v{80+i}")
        k(f"v_cvt_pk_bf16_f32 v{90+2*dt}, v40, v41")
        k(f"v_cvt_pk_bf16_f32 v{91+2*dt}, v42, v43")
        k(f"buffer_store_dwordx2 v[{90+2*dt}:{91+2*dt}], v3, s[36:39], s43 offen offset:{32*dt}")
    k.label("FIN_END")
    k("s_endpgm")
    return k, 220 + 232, 220, (256, 256, 163840)


from gen_attn import gen_attn


HEADER = open("recurrent_scan__mha_block_cached__mixer_token_mlp__prompt.s.ref").read().split("; Override")[0]


def main(out):
    ks = [gen_prep(), gen_mlp1(), gen_attn(), gen_final()]
    txt = HEADER
    for k, nv, acc, (g, b, lds) in ks:
        txt += f"; @launch kernel={k.name} grid=({g},1,1) block=({b},1,1) lds={lds}\n"
    txt += '.amdgcn_target "amdgcn-amd-amdhsa--gfx950"\n'
    bad = 0
    for k, nv, acc, _ in ks:
        for p in check_kernel(k):
            print("HAZARD:", p)
            bad += 1
        txt += kernel_wrap(k, nv, acc)
    open(out, "w").write(txt)
    print("wrote", out, len(txt), "bytes; hazards:", bad)


if __name__ == "__main__":
    main(sys.argv[1] if len(sys.argv) > 1 else "recurrent_scan__mha_block_cached__mixer_token_mlp__prompt.s")
```
